```python
import torch

def _softmax(x, axis=-1):
    return torch.softmax(x, dim=axis)
def _gelu(x):
    return torch.nn.functional.gelu(x, approximate="tanh")
def _silu(x):
    return torch.nn.functional.silu(x)
def _sigmoid(x):
    return torch.sigmoid(x)
def _layernorm(x, axis=-1, eps=1e-5):
    m = x.mean(dim=axis, keepdim=True)
    v = x.var(dim=axis, keepdim=True, unbiased=False)
    return (x - m) / torch.sqrt(v + eps)
def _scatter_add(tgt, idx, src, axis=0):
    return tgt.clone().index_add_(axis, idx, src)
def _segment_sum(src, seg, n):
    out = torch.zeros((n,) + src.shape[1:], dtype=src.dtype)
    return out.index_add_(0, seg, src)
def _pad(x, pw):
    flat = tuple(v for pair in reversed(pw) for v in pair)
    return torch.nn.functional.pad(x, flat)

kernel_name = 'parallel_sum__ssm_conv_s4d__glu_gated_reglu__prompt'

def setup_inputs():

    _w = (lambda a: (lambda t: t.to(torch.bfloat16) if t.is_floating_point() else t)(torch.as_tensor(a)))
    def _A_setup():
        Bsz, L, D, N = 1, 2048, 640, 128
        return {
            "u": _w((lambda *s: torch.randn(*s, dtype=torch.bfloat16) * 0.05)(Bsz, L, D)),
            "log_A_real": _w((lambda *s: torch.randn(*s, dtype=torch.bfloat16) * 3.2)(D, N) * 0.5),
            "A_imag": _w((lambda *s: torch.randn(*s, dtype=torch.bfloat16) * 0.05)(D, N) * 3.14),
            "C_real": _w((lambda *s: torch.randn(*s, dtype=torch.bfloat16) * 0.2)(D, N) / N ** 0.5),
            "C_imag": _w((lambda *s: torch.randn(*s, dtype=torch.bfloat16) * 0.2)(D, N) / N ** 0.5),
            "log_dt": _w((lambda *s: torch.randn(*s, dtype=torch.bfloat16) * 0.05)(D) * 0.5 - 4.0),
            "D_skip": _w((lambda *s: torch.randn(*s, dtype=torch.bfloat16) * 0.05)(D)),
        }
    _A_in = _A_setup()

    def _B_setup():
        B, S, D, F = 1, 2048, 640, 1728
        return {
            "x": _w((lambda *s: torch.randn(*s, dtype=torch.bfloat16) * 0.05)(B, S, D)),
            "W_gate": _w((lambda *s: torch.randn(*s, dtype=torch.bfloat16) * 0.4)(D, F) * (2.0 / D) ** 0.5),
            "W_up": _w((lambda *s: torch.randn(*s, dtype=torch.bfloat16) * 0.4)(D, F) * (2.0 / D) ** 0.5),
            "W_down": _w((lambda *s: torch.randn(*s, dtype=torch.bfloat16) * 0.4)(F, D) * (1.0 / F) ** 0.5),
        }
    _B_in = _B_setup()

    return {
        "A_u": _A_in["u"],
        "A_log_A_real": _A_in["log_A_real"],
        "A_A_imag": _A_in["A_imag"],
        "A_C_real": _A_in["C_real"],
        "A_C_imag": _A_in["C_imag"],
        "A_log_dt": _A_in["log_dt"],
        "A_D_skip": _A_in["D_skip"],
        "B_x": _B_in["x"],
        "B_W_gate": _B_in["W_gate"],
        "B_W_up": _B_in["W_up"],
        "B_W_down": _B_in["W_down"],
    }

def reference(A_u, A_log_A_real, A_A_imag, A_C_real, A_C_imag, A_log_dt, A_D_skip, B_x, B_W_gate, B_W_up, B_W_down):
    def _A_ref(u, log_A_real, A_imag, C_real, C_imag, log_dt, D_skip):
        L = u.shape[1]
        dt = torch.exp(log_dt)
        A = -torch.exp(log_A_real) + 1j * A_imag
        C = (C_real + 1j * C_imag) * dt[:, None]
        pos = (lambda x, dt: x.to(dt))(torch.arange(L), log_dt.dtype)
        P = torch.exp((A * dt[:, None])[:, :, None] * pos[None, None, :])
        K = 2.0 * torch.einsum("dn,dnl->dl", C, P).real
        L2 = 2 * L
        u_t = (lambda x, *d: x.permute(*d))(u, 0, 2, 1)
        Kf = (lambda x, *a, **k: torch.fft.rfft(x.float(), *a, **k))(K, L2)
        Uf = (lambda x, *a, **k: torch.fft.rfft(x.float(), *a, **k))(u_t, L2)
        y = (lambda x, *a, **k: torch.fft.irfft(x, *a, **k).to(torch.bfloat16))(Uf * Kf[None, :, :], L2)[:, :, :L]
        y = (lambda x, *d: x.permute(*d))(y, 0, 2, 1)
        return y + u * D_skip[None, None, :]

    def _B_ref(x, W_gate, W_up, W_down):
        gate = torch.einsum("bsd,df->bsf", x, W_gate)
        up = torch.einsum("bsd,df->bsf", x, W_up)
        gate = gate * (lambda x, dt: x.to(dt))(gate > 0, gate.dtype)
        h = gate * up
        return torch.einsum("bsf,fd->bsd", h, W_down)

    x = A_u
    xn = _layernorm(x, axis=-1)
    return x + _A_ref(xn, A_log_A_real, A_A_imag, A_C_real, A_C_imag, A_log_dt, A_D_skip) + _B_ref(xn, B_W_gate, B_W_up, B_W_down)
```

```python
import re

TRANS = ("v_exp_f32", "v_log_f32", "v_rcp_f32", "v_rsq_f32", "v_sqrt_f32", "v_sin_f32", "v_cos_f32",
         "v_rcp_iflag_f32", "v_exp_f16", "v_log_f16", "v_rcp_f16", "v_rsq_f16", "v_sqrt_f16", "v_sin_f16", "v_cos_f16")
_reg_re = re.compile(r"^(-|abs\(|\|)?\s*([vsa])(?:(\d+)|\[(\d+):(\d+)\])\)?\|?$")
_special = {"vcc": [("s", 106), ("s", 107)], "vcc_lo": [("s", 106)], "vcc_hi": [("s", 107)],
            "exec": [("s", 126), ("s", 127)], "exec_lo": [("s", 126)], "exec_hi": [("s", 127)], "m0": [("s", 124)]}
VCC = frozenset(_special["vcc"]); EXEC = frozenset(_special["exec"]); M0 = ("s", 124)


def regs_of(tok):
    tok = tok.strip()
    if tok in _special:
        return list(_special[tok])
    m = _reg_re.match(tok)
    if not m:
        return []
    k = m.group(2)
    if m.group(3) is not None:
        return [(k, int(m.group(3)))]
    return [(k, i) for i in range(int(m.group(4)), int(m.group(5)) + 1)]


class Ins:
    __slots__ = ("text", "mn", "ops", "mods", "kind", "wr", "rd", "passes", "srcc", "ab", "states", "label", "target",
                 "dpp", "sdwa_move", "wide_store", "lds_dma", "store_data", "lanesel")

    def __init__(self, text):
        self.text = text
        t = text.split(";")[0].strip()
        self.label = None; self.target = None
        self.wr = set(); self.rd = set(); self.passes = 0; self.srcc = (); self.ab = set()
        self.states = 1; self.dpp = False; self.sdwa_move = False; self.wide_store = False; self.lds_dma = False
        self.store_data = set(); self.lanesel = set()
        if not t or t.startswith("."):
            self.kind = "none"; self.states = 0; self.mn = ""; return
        if t.endswith(":"):
            self.kind = "label"; self.label = t[:-1]; self.states = 0; self.mn = ""; return
        parts = t.split(None, 1)
        mn = parts[0]; rest = parts[1] if len(parts) > 1 else ""
        mn = re.sub(r"_e(32|64)$", "", mn)
        self.mn = mn
        fields = []; depth = 0; cur = ""
        for ch in rest:
            if ch in "[(": depth += 1
            if ch in "])": depth -= 1
            if ch == "," and depth == 0:
                fields.append(cur); cur = ""
            else:
                cur += ch
        if cur.strip(): fields.append(cur)
        ops = []; mods = ""
        for i, f in enumerate(fields):
            f = f.strip()
            sp = f.split(None, 1)
            ops.append(sp[0])
            if len(sp) > 1: mods += " " + sp[1]
        self.ops = ops; self.mods = mods
        R = [regs_of(o) for o in ops]
        allr = lambda idx: set(r for i in idx for r in R[i])
        n = len(ops)
        if mn.startswith("v_mfma") or mn.startswith("v_smfmac"):
            self.kind = "mfma"
            if "32x32x16" in mn or "32x32x8" in mn or "32x32x32" in mn: self.passes = 8
            elif "16x16x32" in mn or "16x16x16" in mn or "16x16x64" in mn: self.passes = 4
            else: raise ValueError("unknown mfma " + mn)
            self.wr = allr([0]); self.ab = allr([1, 2]); self.srcc = tuple(R[3]); self.rd = self.ab | set(self.srcc)
        elif mn.startswith("v_"):
            self.kind = "valu"
            if mn.startswith("v_cmpx"): raise ValueError("v_cmpx not supported by hazard pass")
            if mn.startswith("v_permlane") and "swap" in mn:
                self.wr = allr([0, 1]); self.rd = allr([0, 1])
            elif mn in ("v_add_co_u32", "v_sub_co_u32", "v_subrev_co_u32", "v_div_scale_f32", "v_mad_u64_u32"):
                self.wr = allr([0, 1]); self.rd = allr(range(2, n))
            elif mn in ("v_addc_co_u32", "v_subb_co_u32"):
                self.wr = allr([0, 1]); self.rd = allr(range(2, n))
            elif mn == "v_nop":
                pass
            else:
                self.wr = allr([0]); self.rd = allr(range(1, n))
                base = mn.replace("_dpp", "").replace("_sdwa", "")
                if base.startswith("v_fmac") or base.startswith("v_dot2c") or base.startswith("v_pk_fmac") or base == "v_writelane_b32":
                    self.rd |= self.wr
                if "_dpp" in mn or " row_" in mods or " wave_" in mods or "quad_perm" in mods:
                    self.dpp = True; self.rd |= self.wr
                if "_sdwa" in mn and "dst_sel:" in mods and "dst_sel:DWORD" not in mods:
                    self.sdwa_move = True
                    if "UNUSED_PRESERVE" in mods: self.rd |= self.wr
                if base == "v_cndmask_b32" and n == 3: self.rd |= VCC
                if base in ("v_readlane_b32", "v_writelane_b32"): self.lanesel = allr([2])
        elif mn.startswith("buffer_") or mn.startswith("global_") or mn.startswith("flat_") or mn.startswith("scratch_"):
            self.kind = "vmem"
            toks = mods.split()
            if mn in ("buffer_wbl2", "buffer_inv"):
                pass
            elif "lds" in toks or "_lds_" in mn:
                self.lds_dma = True; self.rd = allr(range(n)) | {M0}
            elif "store" in mn:
                self.rd = allr(range(n))
                di = 0 if mn.startswith("buffer_") else 1
                self.store_data = allr([di])
                self.wide_store = mn.endswith("x3") or mn.endswith("x4")
            elif "atomic" in mn:
                self.rd = allr(range(n))
                if "sc0" in toks: self.wr = allr([0])
            else:
                self.wr = allr([0]); self.rd = allr(range(1, n))
        elif mn.startswith("ds_"):
            self.kind = "ds"
            if "read" in mn or "rtn" in mn or "permute" in mn or "swizzle" in mn:
                self.wr = allr([0]); self.rd = allr(range(1, n))
            else:
                self.rd = allr(range(n))
        elif mn.startswith("s_load") or mn.startswith("s_buffer_load") or mn in ("s_memtime", "s_memrealtime") or mn.startswith("s_atomic"):
            self.kind = "smem"; self.wr = allr([0]); self.rd = allr(range(1, n))
        elif mn == "s_nop":
            self.kind = "nop"; self.states = int(ops[0], 0) + 1
        elif mn.startswith("s_cbranch") or mn == "s_branch":
            self.kind = "branch"; self.target = ops[0]
        elif mn in ("s_waitcnt", "s_barrier", "s_endpgm", "s_setprio", "s_sleep", "s_setreg_b32", "s_setreg_imm32_b32"):
            self.kind = "misc"
        elif mn.startswith("s_"):
            self.kind = "salu"
            if mn.startswith("s_cmp") or mn.startswith("s_bitcmp"):
                self.rd = allr(range(n))
            else:
                self.wr = allr([0]); self.rd = allr(range(1, n))
                if "saveexec" in mn: self.wr |= EXEC
        else:
            raise ValueError("cannot classify: " + text)


def isv(r): return r[0] in ("v", "a")


def need(p, c):
    w = 0
    if p.kind == "valu":
        pv = set(r for r in p.wr if isv(r)); ps = set(r for r in p.wr if not isv(r))
        if c.kind == "mfma" and pv & c.rd: w = max(w, 2)
        if c.kind == "valu":
            if p.mn in TRANS and pv & c.rd: w = max(w, 1)
            if ps & c.rd: w = max(w, 2)
            if ps & c.lanesel: w = max(w, 4)
            if c.mn in ("v_readlane_b32", "v_readfirstlane_b32") and pv & c.rd: w = max(w, 1)
            if c.dpp and pv & c.rd: w = max(w, 2)
            if c.mn.startswith("v_permlane") and pv & c.rd: w = max(w, 2)
            if p.sdwa_move and pv & (c.rd | c.wr): w = max(w, 1)
        if c.kind == "vmem" and ps & c.rd: w = max(w, 5)
        if c.kind in ("salu", "smem") and ps & c.rd: w = max(w, 1)
    if p.kind == "mfma":
        big = {4: 8, 8: 12}[p.passes]
        if c.kind == "mfma":
            if p.wr & c.ab: w = max(w, big)
            if p.wr & set(c.srcc):
                if set(c.srcc) == p.wr and c.passes == p.passes: pass
                else: w = max(w, p.passes + 2)
            elif p.wr & c.wr: w = max(w, big)
        elif c.kind in ("valu", "vmem", "ds"):
            if p.wr & (c.rd | c.wr): w = max(w, big)
            if c.kind == "valu" and set(p.srcc) & c.wr: w = max(w, p.passes - 1)
    if p.kind == "salu" and M0 in p.wr and (c.lds_dma or "addtid" in c.mn): w = max(w, 1)
    if p.kind == "vmem" and p.wide_store and p.store_data & c.wr:
        w = max(w, 2 if c.kind == "valu" else 1)
    return w


WIN = 14


def _short(prev, c):
    dist = 0; extra = 0
    for p in reversed(prev):
        if dist >= WIN: break
        if p.kind not in ("none", "label"):
            n = need(p, c)
            if n > dist: extra = max(extra, n - dist)
        dist += p.states
    return extra


def hazard_pass(lines):
    ins = []
    for t in lines:
        c = Ins(t)
        if c.kind not in ("none", "label"):
            e = _short(ins[-40:], c)
            if e:
                ins.append(Ins(f"    s_nop {e-1}    ; hz"))
        ins.append(c)
    changed = True
    while changed:
        changed = False
        lab = {c.label: i for i, c in enumerate(ins) if c.kind == "label"}
        for p, b in enumerate(ins):
            if b.kind != "branch": continue
            q = lab[b.target]
            seq = list(ins[max(0, p - 40):p + 1])
            base = len(seq)
            dist = 0
            for c in ins[q:q + 40]:
                if dist >= WIN: break
                if c.kind not in ("none", "label"):
                    d = dist; e = 0
                    for pr in reversed(seq[:base]):
                        if d >= WIN: break
                        if pr.kind not in ("none", "label"):
                            n = need(pr, c)
                            if n > d: e = max(e, n - d)
                        d += pr.states
                    if e:
                        ins.insert(q + 1, Ins(f"    s_nop {e-1}    ; hz(branch)"))
                        changed = True
                        break
                    if c.mn in ("s_branch", "s_endpgm"): break
                dist += c.states
            if changed: break
    return [c.text for c in ins]


class Asm:
    def __init__(self):
        self.lines = []
        self._uid = 0

    def __call__(self, text):
        for l in text.strip("\n").split("\n"):
            l = l.strip()
            if not l: continue
            self.lines.append(l if l.endswith(":") or l.startswith(".") else "    " + l)

    def label(self, name): self.lines.append(name + ":")

    def uid(self, p="L"):
        self._uid += 1
        return f"{p}_{self._uid}"

    def c(self, text): self.lines.append("    ; " + text)

    def srd(self, s, base, off, nbytes):
        if off:
            self(f"s_add_u32 s{s}, s{base}, {off:#x}")
            self(f"s_addc_u32 s{s+1}, s{base+1}, 0")
        else:
            self(f"s_mov_b32 s{s}, s{base}")
            self(f"s_mov_b32 s{s+1}, s{base+1}")
        self(f"s_mov_b32 s{s+2}, {nbytes:#x}")
        self(f"s_mov_b32 s{s+3}, 0x20000")

    def text(self):
        return "\n".join(hazard_pass(self.lines)) + "\n"


def vr(a, n=1): return f"v{a}" if n == 1 else f"v[{a}:{a+n-1}]"
def sr(a, n=1): return f"s{a}" if n == 1 else f"s[{a}:{a+n-1}]"


def kernel_head(name):
    return f".globl {name}\n.p2align 8\n.type {name},@function\n{name}:\n"


def kernel_desc(name, vgpr, sgpr=102, accum=None):
    accum = accum or ((min(vgpr, 256) + 3) // 4 * 4)
    return f""".p2align 6
.amdhsa_kernel {name}
  .amdhsa_next_free_vgpr {vgpr}
  .amdhsa_next_free_sgpr {sgpr}
  .amdhsa_accum_offset {accum}
  .amdhsa_group_segment_fixed_size 0
  .amdhsa_kernarg_size 112
  .amdhsa_user_sgpr_count 2
  .amdhsa_user_sgpr_kernarg_segment_ptr 1
  .amdhsa_system_sgpr_workgroup_id_x 1
  .amdhsa_float_denorm_mode_32 3
.end_amdhsa_kernel
"""
```

```python
from asmlib import *
import struct, math

def f2u(x): return struct.unpack("<I", struct.pack("<f", x))[0]
def u2f(u): return struct.unpack("<f", struct.pack("<I", u))[0]

L, D, F, N = 2048, 640, 1728, 128
KA = dict(x=0, lar=8, aim=16, cr=24, ci=32, ldt=40, dsk=48, bx=56, wg=64, wu=72, wd=80, out=88, dbg=96, ws=104)
WS_XN, WS_XNT, WS_KL, WS_WDT, WS_H, WS_AT = 0x0, 0x300000, 0x600000, 0x900000, 0xC00000, 0x1400000
SZ_X = L * D * 2
SZ_WDT = 40 * 54 * 1024
SZ_H = 128 * 54 * 1024
LOG2E = 1.4426950408889634
LOG2E_HI = u2f(f2u(LOG2E)); LOG2E_LO = LOG2E - LOG2E_HI
INV2PI = 1.0 / (2 * math.pi)
INV2PI_HI = u2f(0x3E22F983); INV2PI_LO = INV2PI - INV2PI_HI


def magic(c): return (1 << 32) // c + 1


def unpack(a, lo, hi, src):
    a(f"v_lshlrev_b32 v{lo}, 16, v{src}")
    a(f"v_and_b32 v{hi}, 0xffff0000, v{src}")


def round_bf16(a, dst, src):
    a(f"v_cvt_pk_bf16_f32 v{dst}, v{src}, v{src}")
    a(f"v_and_b32 v{dst}, 0xffff0000, v{dst}")


def row_allreduce(a, op, v, tmp=None):
    for sh in (8, 4, 2, 1):
        a(f"{op}_dpp v{v}, v{v}, v{v} row_ror:{sh} row_mask:0xf bank_mask:0xf")


LN_STRIDE = 1312

def ln_role(a, s_blk, s_wave, sX, sXN, sXNT, write_xn=True):
    vL, vJ, vR, vOff, vLds = 1, 2, 3, 4, 5
    X = 8
    U = 48
    A0 = 88
    vM, vS, vT = 96, 98, 100
    T = 102
    a(f"v_and_b32 v{vL}, 63, v0")
    a(f"v_and_b32 v{vJ}, 15, v{vL}")
    a(f"v_lshrrev_b32 v{vR}, 4, v{vL}")
    a(f"v_mul_u32_u24 v{vOff}, 1280, v{vR}")
    a(f"v_lshl_add_u32 v{vOff}, v{vJ}, 4, v{vOff}")
    a(f"s_lshl_b32 s40, s{s_blk}, 3")
    a(f"s_add_u32 s40, s40, s{s_wave}")
    a(f"s_mul_i32 s40, s40, {8*1280}")
    a(f"s_add_u32 s41, s40, {4*1280}")
    for p in range(2):
        for i in range(5):
            r = X + (p * 5 + i) * 4
            a(f"buffer_load_dwordx4 {vr(r,4)}, v{vOff}, {sr(sX,4)}, s{40+p} offen offset:{i*256}")
    a(f"s_mul_i32 s42, s{s_wave}, {8*LN_STRIDE}")
    a(f"v_mul_u32_u24 v{vLds}, {LN_STRIDE}, v{vR}")
    a(f"v_lshl_add_u32 v{vLds}, v{vJ}, 4, v{vLds}")
    a(f"v_add_u32 v{vLds}, s42, v{vLds}")
    a(f"s_mov_b32 s43, {f2u(1.0/640):#x}")
    for p in range(2):
        a(f"s_waitcnt vmcnt({5 if p == 0 else (5 if write_xn else 0)})")
        Xp = X + p * 20
        for k in range(20):
            unpack(a, U + 2*k, U + 2*k + 1, Xp + k)
        for q in range(4):
            a(f"v_pk_add_f32 {vr(A0+2*q,2)}, {vr(U+2*q,2)}, {vr(U+2*(q+4),2)}")
        for k in range(8, 20):
            q = k % 4
            a(f"v_pk_add_f32 {vr(A0+2*q,2)}, {vr(A0+2*q,2)}, {vr(U+2*k,2)}")
        a(f"v_pk_add_f32 {vr(A0,2)}, {vr(A0,2)}, {vr(A0+2,2)}")
        a(f"v_pk_add_f32 {vr(A0+4,2)}, {vr(A0+4,2)}, {vr(A0+6,2)}")
        a(f"v_pk_add_f32 {vr(A0,2)}, {vr(A0,2)}, {vr(A0+4,2)}")
        a(f"v_add_f32 v{vM}, v{A0}, v{A0+1}")
        row_allreduce(a, "v_add_f32", vM)
        a(f"v_mul_f32 v{vM}, s43, v{vM}")
        for k in range(20):
            q = k % 4
            a(f"v_pk_add_f32 {vr(T+2*q,2)}, {vr(U+2*k,2)}, {vr(vM,2)} op_sel_hi:[1,0] neg_lo:[0,1] neg_hi:[0,1]")
            if k < 4:
                a(f"v_pk_mul_f32 {vr(A0+2*q,2)}, {vr(T+2*q,2)}, {vr(T+2*q,2)}")
            else:
                a(f"v_pk_fma_f32 {vr(A0+2*q,2)}, {vr(T+2*q,2)}, {vr(T+2*q,2)}, {vr(A0+2*q,2)}")
        a(f"v_pk_add_f32 {vr(A0,2)}, {vr(A0,2)}, {vr(A0+2,2)}")
        a(f"v_pk_add_f32 {vr(A0+4,2)}, {vr(A0+4,2)}, {vr(A0+6,2)}")
        a(f"v_pk_add_f32 {vr(A0,2)}, {vr(A0,2)}, {vr(A0+4,2)}")
        a(f"v_add_f32 v{vS}, v{A0}, v{A0+1}")
        row_allreduce(a, "v_add_f32", vS)
        a(f"v_mul_f32 v{vS}, s43, v{vS}")
        round_bf16(a, vM, vM)
        round_bf16(a, vS, vS)
        a(f"v_add_f32 v{vS}, {f2u(1e-5):#x}, v{vS}")
        round_bf16(a, vS, vS)
        a(f"v_sqrt_f32 v{vS}, v{vS}")
        round_bf16(a, vS, vS)
        a(f"v_rcp_f32 v{vS}, v{vS}")
        for k in range(20):
            q = k % 4
            t = T + 2*q
            a(f"v_pk_add_f32 {vr(t,2)}, {vr(U+2*k,2)}, {vr(vM,2)} op_sel_hi:[1,0] neg_lo:[0,1] neg_hi:[0,1]")
            a(f"v_cvt_pk_bf16_f32 v{t+1}, v{t}, v{t+1}")
            unpack(a, t, t + 1, t + 1)
            a(f"v_pk_mul_f32 {vr(t,2)}, {vr(t,2)}, {vr(vS,2)} op_sel_hi:[1,0]")
            a(f"v_cvt_pk_bf16_f32 v{Xp+k}, v{t}, v{t+1}")
        for i in range(5):
            r = Xp + i * 4
            if write_xn:
                a(f"buffer_store_dwordx4 {vr(r,4)}, v{vOff}, {sr(sXN,4)}, s{40+p} offen offset:{i*256}")
            a(f"ds_write_b128 v{vLds}, {vr(r,4)} offset:{p*4*LN_STRIDE + i*256}")
    vG, vRr, vC4, vTr, vSt = 6, 7, 96, 97, 98
    a(f"v_bfe_u32 v{vRr}, v{vL}, 2, 2")
    a(f"v_and_b32 v{vC4}, 3, v{vL}")
    a(f"v_lshl_add_u32 v{vTr}, v{vR}, 3, v{vRr}")
    a(f"v_mul_u32_u24 v{vTr}, {LN_STRIDE}, v{vTr}")
    a(f"v_lshl_add_u32 v{vTr}, v{vC4}, 3, v{vTr}")
    a(f"s_mul_i32 s42, s{s_wave}, 160")
    a(f"v_add_u32 v{vTr}, s42, v{vTr}")
    a(f"v_lshlrev_b32 v{vSt}, 12, v{vJ}")
    a(f"v_lshl_add_u32 v{vSt}, v{vR}, 4, v{vSt}")
    a(f"s_mul_i32 s44, s{s_wave}, {5*65536}")
    a(f"s_lshl_b32 s45, s{s_blk}, 7")
    a(f"s_add_u32 s44, s44, s45")
    a("s_waitcnt lgkmcnt(0)")
    a("s_barrier")
    for ct in range(5):
        for half in range(2):
            r = U + (ct * 2 + half) * 4
            for h in range(2):
                a(f"ds_read_b64_tr_b16 {vr(r+2*h,2)}, v{vTr} offset:{half*32*LN_STRIDE + h*4*LN_STRIDE + ct*32}")
    for ct in range(5):
        for half in range(2):
            r = U + (ct * 2 + half) * 4
            a(f"s_waitcnt lgkmcnt({min(15, 2*(9 - (ct*2+half)))})")
            a(f"buffer_store_dwordx4 {vr(r,4)}, v{vSt}, {sr(sXNT,4)}, s44 offen offset:{half*64}")
        if ct < 4: a(f"s_add_u32 s44, s44, 65536")


def wdt_role(a, s_unit, s_ldsbase, sWD, sWDT):
    vL, vOff, vT, vA, vSt = 1, 2, 3, 4, 8
    R = 12
    a(f"v_and_b32 v{vL}, 63, v0")
    a(f"s_mul_hi_u32 s40, s{s_unit}, {magic(10):#x}")
    a(f"s_mul_i32 s41, s40, 10")
    a(f"s_sub_u32 s41, s{s_unit}, s41")
    a(f"v_lshrrev_b32 v{vT}, 4, v{vL}")
    a(f"v_lshlrev_b32 v{vT}, 1, v{vT}")
    a(f"v_and_b32 v{vOff}, 7, v{vL}")
    a(f"v_xor_b32 v{vOff}, v{vOff}, v{vT}")
    a(f"v_lshlrev_b32 v{vOff}, 4, v{vOff}")
    a(f"v_lshrrev_b32 v{vT}, 3, v{vL}")
    a(f"v_mul_u32_u24 v{vT}, 1280, v{vT}")
    a(f"v_add_u32 v{vOff}, v{vOff}, v{vT}")
    a(f"s_mul_i32 s42, s40, {32*1280}")
    a(f"s_lshl_b32 s43, s41, 7")
    a(f"s_add_u32 s42, s42, s43")
    for j in range(4):
        a(f"s_add_u32 m0, s{s_ldsbase}, {j*1024}")
        a(f"buffer_load_dwordx4 v{vOff}, {sr(sWD,4)}, s42 offen lds")
        if j < 3: a(f"s_add_u32 s42, s42, {8*1280}")
    a(f"v_lshrrev_b32 v{vT}, 2, v{vL}")
    a(f"v_lshlrev_b32 v{vA}, 7, v{vT}")
    a(f"v_bfe_u32 v{vT}, v{vL}, 3, 2")
    a(f"v_lshl_add_u32 v{vA}, v{vT}, 5, v{vA}")
    a(f"v_and_b32 v{vT}, 3, v{vL}")
    a(f"v_lshl_add_u32 v{vA}, v{vT}, 3, v{vA}")
    for T in range(1, 4):
        a(f"v_xor_b32 v{vA+T}, {T*32}, v{vA}")
    for T in range(4):
        a(f"v_add_u32 v{vA+T}, s{s_ldsbase}, v{vA+T}")
    a(f"v_lshlrev_b32 v{vSt}, 4, v{vL}")
    a("s_waitcnt vmcnt(0)")
    for T in range(4):
        for h in range(2):
            a(f"ds_read_b64_tr_b16 {vr(R+T*4+2*h,2)}, v{vA+T} offset:{h*2048}")
    for T in range(4):
        a(f"s_lshl_b32 s44, s41, 2")
        a(f"s_add_u32 s44, s44, {T}")
        a(f"s_mul_hi_u32 s45, s44, {magic(5):#x}")
        a(f"s_mul_i32 s46, s45, 5")
        a(f"s_sub_u32 s46, s44, s46")
        a(f"s_mul_i32 s45, s45, 54")
        a(f"s_add_u32 s45, s45, s40")
        a(f"s_mul_i32 s45, s45, 5")
        a(f"s_add_u32 s45, s45, s46")
        a(f"s_lshl_b32 s45, s45, 10")
        a(f"s_waitcnt lgkmcnt({2*(3-T)})")
        a(f"buffer_store_dwordx4 {vr(R+T*4,4)}, v{vSt}, {sr(sWDT,4)}, s45 offen")


KG_STRIDE = 528

def cmul(a, d, x, y, t):
    a(f"v_pk_mul_f32 {vr(t,2)}, {vr(x,2)}, {vr(y,2)} op_sel_hi:[1,0]")
    return f"v_pk_fma_f32 {vr(d,2)}, {vr(x,2)}, {vr(y,2)}, {vr(t,2)} op_sel:[1,1,0] op_sel_hi:[0,1,1] neg_lo:[1,0,0]"


def exp_bf16(a, dst, x, t0, t1, sL, sLlo, sLn2):
    a(f"v_mul_f32 v{t0}, s{sL}, v{x}")
    a(f"v_fma_f32 v{t1}, v{x}, s{sL}, -v{t0}")
    a(f"v_fma_f32 v{t1}, v{x}, s{sLlo}, v{t1}")
    a(f"v_exp_f32 v{t0}, v{t0}")
    a(f"v_mul_f32 v{t1}, s{sLn2}, v{t1}")
    a(f"v_fma_f32 v{dst}, v{t0}, v{t1}, v{t0}")
    round_bf16(a, dst, dst)


def kgen_role(a, s_ch, s_ldsbase, sLAR, sAIM, sCR, sCI, sLDT, sKL):
    vL, vOff, vW, vRd = 1, 2, 3, 4
    vLar, vAim, vCr, vCi, vLdt = 5, 6, 7, 8, 9
    vDt, vT0, vT1, vT2, vMul = 10, 11, 12, 13, 14
    def P(i, m): return 16 + (i * 2 + m) * 2
    iW1, iW8, iE, iW2, iW4, iC, iH, iA, iB, iT, iT2 = range(11)
    AR = 60; AI = 62
    PK = 64
    FR = 72
    GR = 136
    ACC = 152
    sL, sLlo, sLn2, sClo = 48, 49, 50, 51
    a(f"v_and_b32 v{vL}, 63, v0")
    a(f"v_lshlrev_b32 v{vOff}, 2, v{vL}")
    a(f"s_lshl_b32 s40, s{s_ch}, 8")
    a(f"s_lshl_b32 s41, s{s_ch}, 1")
    a(f"v_mov_b32 v{vT0}, 0")
    a(f"buffer_load_ushort v{vLdt}, v{vT0}, {sr(sLDT,4)}, s41 offen")
    a(f"buffer_load_dword v{vLar}, v{vOff}, {sr(sLAR,4)}, s40 offen")
    a(f"buffer_load_dword v{vAim}, v{vOff}, {sr(sAIM,4)}, s40 offen")
    a(f"buffer_load_dword v{vCr}, v{vOff}, {sr(sCR,4)}, s40 offen")
    a(f"buffer_load_dword v{vCi}, v{vOff}, {sr(sCI,4)}, s40 offen")
    a(f"s_mov_b32 s{sL}, {f2u(LOG2E_HI):#x}")
    a(f"s_mov_b32 s{sLlo}, {f2u(LOG2E_LO):#x}")
    a(f"s_mov_b32 s{sLn2}, {f2u(math.log(2)):#x}")
    a(f"s_mov_b32 s{sClo}, {f2u(INV2PI_LO):#x}")
    a(f"v_lshlrev_b32 v{vW}, 3, v{vL}")
    a(f"v_add_u32 v{vW}, s{s_ldsbase}, v{vW}")
    a(f"v_and_b32 v{vRd}, 31, v{vL}")
    a(f"v_mul_u32_u24 v{vRd}, {KG_STRIDE}, v{vRd}")
    a(f"v_lshrrev_b32 v{vT1}, 5, v{vL}")
    a(f"v_lshl_add_u32 v{vRd}, v{vT1}, 4, v{vRd}")
    a(f"v_add_u32 v{vRd}, s{s_ldsbase}, v{vRd}")
    a("s_waitcnt vmcnt(4)")
    a(f"v_lshlrev_b32 v{vLdt}, 16, v{vLdt}")
    exp_bf16(a, vDt, vLdt, vT0, vT1, sL, sLlo, sLn2)
    a("s_waitcnt vmcnt(2)")
    unpack(a, AR, AR + 1, vLar)
    unpack(a, AI, AI + 1, vAim)
    for m in range(2):
        exp_bf16(a, AR + m, AR + m, vT0, vT1, sL, sLlo, sLn2)
        a(f"v_mul_f32 v{AR+m}, -v{AR+m}, v{vDt}") if False else a(f"v_mul_f32_e64 v{AR+m}, -v{AR+m}, v{vDt}")
        a(f"v_mul_f32 v{AI+m}, v{AI+m}, v{vDt}")
    for (idx, k) in ((iW1, 1), (iW8, 8), (iE, 256)):
        a(f"s_mov_b32 s52, {f2u(LOG2E_HI*k):#x}")
        a(f"s_mov_b32 s53, {f2u(float(k)):#x}")
        for m in range(2):
            d = P(idx, m); t = P(iT, m); z = P(iT2, m)
            a(f"v_mul_f32 v{t}, s52, v{AR+m}")
            a(f"v_mul_f32 v{z}, s53, v{AI+m}")
            a(f"v_exp_f32 v{t}, v{t}")
            a(f"v_mul_f32 v{z+1}, 0.15915494, v{z}")
            a(f"v_fma_f32 v{t+1}, v{z}, 0.15915494, -v{z+1}")
            a(f"v_fma_f32 v{t+1}, v{z}, s{sClo}, v{t+1}")
            a(f"v_fract_f32 v{z+1}, v{z+1}")
            a(f"v_add_f32 v{z+1}, v{z+1}, v{t+1}")
            a(f"v_cos_f32 v{d}, v{z+1}")
            a(f"v_sin_f32 v{d+1}, v{z+1}")
            a(f"v_pk_mul_f32 {vr(d,2)}, {vr(d,2)}, {vr(t,2)} op_sel_hi:[1,0]")
    a("s_waitcnt vmcnt(0)")
    c0, c1 = P(iC, 0), P(iC, 1)
    a(f"v_lshlrev_b32 v{c0}, 16, v{vCr}")
    a(f"v_and_b32 v{c1}, 0xffff0000, v{vCr}")
    a(f"v_lshlrev_b32 v{c0+1}, 16, v{vCi}")
    a(f"v_and_b32 v{c1+1}, 0xffff0000, v{vCi}")
    a(f"v_max_f32_e64 v{vT0}, abs(v{c0}), abs(v{c0+1})")
    a(f"v_max3_f32 v{vT0}, abs(v{c1}), abs(v{c1+1}), v{vT0}")
    row_allreduce(a, "v_max_f32", vT0)
    for i in range(4):
        a(f"v_readlane_b32 s{54+i}, v{vT0}, {16*i}")
    a("s_max_u32 s54, s54, s55")
    a("s_max_u32 s56, s56, s57")
    a("s_max_u32 s54, s54, s56")
    a("s_lshr_b32 s54, s54, 23")
    a("s_min_u32 s54, s54, 253")
    a("s_sub_u32 s55, 254, s54")
    a("s_lshl_b32 s55, s55, 23")
    a("s_lshl_b32 s54, s54, 23")
    a(f"v_mul_f32 v{vMul}, s54, v{vDt}")
    a(f"v_add_f32 v{vMul}, v{vMul}, v{vMul}")
    for m in range(2):
        a(f"v_mul_f32 v{P(iC,m)}, s55, v{P(iC,m)}")
        a(f"v_mul_f32 v{P(iC,m)+1}, s55, v{P(iC,m)+1}")

    pkc = [0]
    def emit_row(idx, row, neg):
        pk = PK + 2 * (pkc[0] % 4); pkc[0] += 1
        for m in range(2):
            s = P(idx, m)
            a(f"v_cvt_pk_f16_f32 v{pk+m}, v{s}, {'-' if neg else ''}v{s+1}")
        rows = row if isinstance(row, (list, tuple)) else [row]
        for r_ in rows:
            a(f"ds_write_b64 v{vW}, {vr(pk,2)} offset:{r_*KG_STRIDE}")

    def mul2(d, x, y):
        l2 = [cmul(a, P(d, m), P(x, m), P(y, m), P(iT, m)) for m in range(2)]
        for t in l2: a(t)

    a(f"v_mov_b32 v{PK+6}, 0x3c00")
    a(f"v_mov_b32 v{PK+7}, 0x3c00")
    a(f"ds_write_b64 v{vW}, {vr(PK+6,2)} offset:0")
    emit_row(iW8, 1, False)
    cur = iW8
    for j in range(2, 32):
        nxt = iA if j % 2 == 0 else iB
        mul2(nxt, cur, iW8)
        emit_row(nxt, j, False)
        cur = nxt
    for kk in range(16):
        a(f"ds_read_b128 {vr(FR+4*kk,4)}, v{vRd} offset:{kk*32}")
    emit_row(iC, 0, True)
    cur = iC
    for i in range(1, 8):
        nxt = iA if i % 2 == 0 else iB
        mul2(nxt, cur, iW1)
        emit_row(nxt, i, True)
        cur = nxt
    mul2(iW2, iW1, iW1)
    mul2(iW4, iW2, iW2)
    mul2(iH, iC, iE); emit_row(iH, 24, True)
    mul2(iA, iH, iW2); emit_row(iA, 25, True)
    mul2(iB, iH, iW4); emit_row(iB, [26, 28], True)
    mul2(iA, iB, iW2); emit_row(iA, 29, True)
    mul2(iB, iH, iW8); emit_row(iB, 30, True)
    Hs = [iH, iC]
    for k, rows in ((2, (8, 9, 10)), (3, (12, 13, 14))):
        src = Hs[k % 2]; dst = Hs[(k + 1) % 2]
        mul2(dst, src, iE); emit_row(dst, rows[0], True)
        mul2(iA, dst, iW4); emit_row(iA, rows[1], True)
        mul2(iB, dst, iW8); emit_row(iB, rows[2], True)
    for k in range(4, 8):
        src = Hs[k % 2]; dst = Hs[(k + 1) % 2]
        mul2(dst, src, iE); emit_row(dst, 16 + 2 * (k - 4), True)
        t = iA if k % 2 == 0 else iB
        mul2(t, dst, iW8); emit_row(t, 17 + 2 * (k - 4), True)
    for kk in range(4):
        a(f"ds_read_b128 {vr(GR+4*kk,4)}, v{vRd} offset:{kk*32}")
    for kk in range(16):
        a(f"s_waitcnt lgkmcnt({min(3, 15-kk)})")
        g = GR + 4 * (kk % 4)
        a(f"v_mfma_f32_32x32x16_f16 {vr(ACC,16)}, {vr(g,4)}, {vr(FR+4*kk,4)}, {vr(ACC,16) if kk else 0}")
        if kk + 4 < 16:
            a(f"ds_read_b128 {vr(g,4)}, v{vRd} offset:{(kk+4)*32}")
    vJ, vHf, vS8, vS16a, vS16b = 16, 17, 18, 19, 20
    O = 24
    a(f"v_and_b32 v{vJ}, 31, v{vL}")
    a(f"v_lshrrev_b32 v{vHf}, 5, v{vL}")
    a(f"v_lshlrev_b32 v{vJ}, 4, v{vJ}")
    a(f"v_lshl_add_u32 v{vS8}, v{vHf}, 3, v{vJ}")
    a(f"v_lshl_add_u32 v{vS16a}, v{vHf}, 9, v{vJ}")
    a(f"v_lshl_add_u32 v{vS16b}, v{vHf}, 10, v{vJ}")
    a(f"v_and_b32 v{vT0}, 1, v{vL}")
    a(f"v_cmp_eq_u32 vcc, 0, v{vT0}")
    a(f"s_lshl_b32 s40, s{s_ch}, 12")
    for r in (0, 1, 2, 3, 4, 5, 6, 8, 9, 10, 11, 12, 13, 14):
        a(f"v_mul_f32 v{ACC+r}, v{ACC+r}, v{vMul}")
    d = lambda r: f"v{ACC+r}"
    a(f"v_cvt_pk_bf16_f32 v{O}, {d(0)}, {d(1)}")
    a(f"v_cvt_pk_bf16_f32 v{O+1}, {d(2)}, {d(3)}")
    a(f"buffer_store_dwordx2 {vr(O,2)}, v{vS8}, {sr(sKL,4)}, s40 offen")
    a(f"v_cvt_pk_bf16_f32 v{O+2}, {d(12)}, {d(12)}")
    a(f"v_cvt_pk_bf16_f32 v{O+3}, {d(13)}, {d(14)}")
    a(f"buffer_store_dwordx2 {vr(O+2,2)}, v{vS8}, {sr(sKL,4)}, s40 offen offset:512")
    a(f"v_cvt_pk_bf16_f32 v{O+4}, {d(4)}, {d(4)}")
    a(f"v_cvt_pk_bf16_f32 v{O+5}, {d(4)}, {d(5)}")
    a(f"v_cvt_pk_bf16_f32 v{O+6}, {d(5)}, {d(5)}")
    a(f"v_cvt_pk_bf16_f32 v{O+7}, {d(6)}, {d(6)}")
    a(f"buffer_store_dwordx4 {vr(O+4,4)}, v{vS16a}, {sr(sKL,4)}, s40 offen offset:1024")
    for q in range(2):
        o = O + 8 + 4 * q; v_, vp = 8 + 2 * q, 9 + 2 * q
        a(f"v_cndmask_b32 v{vT1}, {d(vp)}, {d(v_)}, vcc")
        a(f"v_cvt_pk_bf16_f32 v{o}, {d(v_)}, {d(v_)}")
        a(f"v_cvt_pk_bf16_f32 v{o+1}, {d(v_)}, {d(v_)}")
        a(f"v_cvt_pk_bf16_f32 v{o+2}, v{vT1}, {d(vp)}")
        a(f"v_cvt_pk_bf16_f32 v{o+3}, {d(vp)}, {d(vp)}")
        a(f"buffer_store_dwordx4 {vr(o,4)}, v{vS16b}, {sr(sKL,4)}, s40 offen offset:{2048+512*q}")
```

```python
import sys
from parts import *

NAME = "parallel_sum__ssm_conv_s4d__glu_gated_reglu__prompt"


def load_ptrs(a, names, s0):
    d = {}
    for i, n in enumerate(names):
        a(f"s_load_dwordx2 {sr(s0+2*i,2)}, s[0:1], {KA[n]}")
        d[n] = s0 + 2 * i
    return d


def wave_id(a, s):
    a("v_lshrrev_b32 v1, 6, v0")
    a(f"v_readfirstlane_b32 s{s}, v1")


def k_prep():
    a = Asm()
    a("s_cmp_ge_u32 s2, 180")
    a("s_cbranch_scc1 P_end")
    p = load_ptrs(a, ["x", "lar", "aim", "cr", "ci", "ldt", "wd", "ws"], 60)
    wave_id(a, 3)
    a("s_waitcnt lgkmcnt(0)")
    a("s_cmp_ge_u32 s2, 32")
    a("s_cbranch_scc1 P_notln")
    a.srd(4, p["x"], 0, SZ_X)
    a.srd(8, p["ws"], WS_XN, SZ_X)
    a.srd(12, p["ws"], WS_XNT, SZ_X)
    ln_role(a, 2, 3, 4, 8, 12)
    a("s_endpgm")
    a.label("P_notln")
    a("s_cmp_ge_u32 s2, 112")
    a("s_cbranch_scc1 P_wdt")
    a.srd(4, p["lar"], 0, D * N * 2)
    a.srd(8, p["aim"], 0, D * N * 2)
    a.srd(12, p["cr"], 0, D * N * 2)
    a.srd(16, p["ci"], 0, D * N * 2)
    a.srd(20, p["ldt"], 0, D * 2)
    a.srd(24, p["ws"], WS_KL, SZ_X)
    a("s_sub_u32 s28, s2, 32")
    a("s_lshl_b32 s28, s28, 3")
    a("s_add_u32 s28, s28, s3")
    a(f"s_mul_i32 s29, s3, {32*KG_STRIDE}")
    kgen_role(a, 28, 29, 4, 8, 12, 16, 20, 24)
    a("s_endpgm")
    a.label("P_wdt")
    a("s_sub_u32 s28, s2, 112")
    a("s_lshl_b32 s28, s28, 3")
    a("s_add_u32 s28, s28, s3")
    a("s_cmp_ge_u32 s28, 540")
    a("s_cbranch_scc1 P_end")
    a.srd(4, p["wd"], 0, F * D * 2)
    a.srd(8, p["ws"], WS_WDT, SZ_WDT)
    a("s_lshl_b32 s29, s3, 12")
    wdt_role(a, 28, 29, 4, 8)
    a.label("P_end")
    a("s_endpgm")
    return a


BLK = 49152

def k_gemm1():
    a = Asm()
    a("s_cmp_ge_u32 s2, 224")
    a("s_cbranch_scc1 G1_end")
    p = load_ptrs(a, ["wg", "wu", "ws"], 60)
    wave_id(a, 3)
    a("s_and_b32 s20, s2, 7")
    a("s_lshr_b32 s21, s2, 3")
    a("s_bfe_u32 s22, s20, 0x10001")
    a("s_mul_i32 s22, s22, 28")
    a("s_add_u32 s22, s22, s21")
    a("s_lshr_b32 s23, s20, 2")
    a("s_mul_i32 s23, s23, 7")
    a("s_lshr_b32 s24, s22, 3")
    a("s_add_u32 s23, s23, s24")
    a("s_and_b32 s24, s20, 1")
    a("s_lshl_b32 s24, s24, 3")
    a("s_and_b32 s22, s22, 7")
    a("s_add_u32 s24, s24, s22")
    sFT, sMT = 23, 24
    a("v_and_b32 v1, 63, v0")
    a("s_waitcnt lgkmcnt(0)")
    a("s_cmp_ge_u32 s3, 4")
    a("s_cbranch_scc0 G1_compute")
    a.srd(4, p["ws"], WS_XN, SZ_X)
    a.srd(8, p["wg"], 0, D * F * 2)
    a.srd(12, p["wu"], 0, D * F * 2)
    a("s_sub_u32 s3, s3, 4")
    a("s_and_b32 s25, s3, 1")
    vX, vW, vT = 2, 3, 4
    a(f"v_lshrrev_b32 v{vT}, 4, v1")
    a("s_lshl_b32 s26, s25, 2")
    a(f"v_add_u32 v{vT}, s26, v{vT}")
    a(f"v_and_b32 v{vX}, 7, v1")
    a(f"v_xor_b32 v{vX}, v{vX}, v{vT}")
    a(f"v_lshlrev_b32 v{vX}, 4, v{vX}")
    a(f"v_lshrrev_b32 v5, 3, v1")
    a(f"v_mul_u32_u24 v5, 1280, v5")
    a(f"v_add_u32 v{vX}, v{vX}, v5")
    a(f"v_lshlrev_b32 v{vT}, 1, v{vT}")
    a(f"v_and_b32 v{vW}, 15, v1")
    a(f"v_xor_b32 v{vW}, v{vW}, v{vT}")
    a(f"v_lshlrev_b32 v{vW}, 4, v{vW}")
    a(f"v_lshrrev_b32 v5, 4, v1")
    a(f"v_mul_u32_u24 v5, 3456, v5")
    a(f"v_add_u32 v{vW}, v{vW}, v5")
    sXo, sWo, sXl, sWl = 30, 31, 32, 33
    a(f"s_lshl_b32 s{sXo}, s{sMT}, 4")
    a(f"s_add_u32 s{sXo}, s{sXo}, s3")
    a(f"s_mul_i32 s{sXo}, s{sXo}, {8*1280}")
    a(f"s_mul_i32 s{sWo}, s3, {8*3456}")
    a(f"s_lshl_b32 s26, s{sFT}, 8")
    a(f"s_add_u32 s{sWo}, s{sWo}, s26")
    a(f"s_lshl_b32 s{sXl}, s3, 10")
    a(f"s_lshl_b32 s{sWl}, s3, 11")

    def issue_x(blk):
        for q in range(4):
            if isinstance(blk, int):
                a(f"s_add_u32 m0, s{sXl}, {blk + q*4096}")
            else:
                a(f"s_add_u32 s34, s{sXl}, {blk}")
                a(f"s_add_u32 m0, s34, {q*4096}")
            a(f"s_add_u32 s35, s{sXo}, {q*32*1280}")
            a(f"buffer_load_dwordx4 v{vX}, s[4:7], s35 offen lds")
        a(f"s_add_u32 s{sXo}, s{sXo}, 128")

    def issue_w(blk, sub):
        for mat in range(2):
            for q in range(2):
                off = sub + mat * 8192 + q * 1024
                if isinstance(blk, int):
                    a(f"s_add_u32 m0, s{sWl}, {blk + off}")
                else:
                    a(f"s_add_u32 s34, s{sWl}, {blk}")
                    a(f"s_add_u32 m0, s34, {off}")
                a(f"s_add_u32 s35, s{sWo}, {q*4*3456}")
                a(f"buffer_load_dwordx4 v{vW}, {sr(8+4*mat,4)}, s35 offen lds")
        a(f"s_add_u32 s{sWo}, s{sWo}, {32*3456}")

    issue_x(0); issue_w(0, 16384); issue_w(0, 32768)
    issue_x(BLK); issue_w(BLK, 16384); issue_w(BLK, 32768)
    issue_w(2 * BLK, 16384)
    a(f"s_mov_b32 s36, {2*BLK}")
    a("s_mov_b32 s37, 0")
    a.label("G1_lloop")
    a("s_waitcnt vmcnt(20)")
    a("s_barrier")
    a("s_cmp_ge_u32 s37, 8")
    a(f"s_cselect_b32 s{sXo}, 0x7ff00000, s{sXo}")
    issue_x("s36"); issue_w("s36", 32768)
    a(f"s_add_u32 s36, s36, {BLK}")
    a(f"s_cmp_ge_u32 s36, {3*BLK}")
    a("s_cselect_b32 s36, 0, s36")
    a("s_waitcnt vmcnt(24)")
    a("s_barrier")
    issue_w("s36", 16384)
    a("s_add_u32 s37, s37, 1")
    a("s_cmp_lt_u32 s37, 10")
    a("s_cbranch_scc1 G1_lloop")
    a("s_endpgm")
    a.label("G1_compute")
    a.srd(4, p["ws"], WS_H, SZ_H)
    bW0, bW1, bX0, bX1 = 2, 3, 4, 5
    aW0, aW1, aX0, aX1 = 6, 7, 8, 9
    vZ = 10
    FR = [16, 64]
    ACC = 112
    g, r, c4, t = 11, 12, 13, 14
    a(f"v_lshrrev_b32 v{g}, 4, v1")
    a(f"v_bfe_u32 v{r}, v1, 2, 2")
    a(f"v_and_b32 v{c4}, 3, v1")
    a(f"v_lshl_add_u32 v{bW0}, v{g}, 3, v{r}")
    a(f"v_lshlrev_b32 v{bW0}, 8, v{bW0}")
    a(f"v_lshl_add_u32 v{bW0}, v{c4}, 3, v{bW0}")
    a(f"v_and_b32 v{t}, 1, v{g}")
    a(f"v_lshl_or_b32 v{t}, v{t}, 2, v{r}")
    a("s_lshl_b32 s26, s3, 1")
    a(f"v_xor_b32 v{t}, s26, v{t}")
    a(f"v_lshl_add_u32 v{bW0}, v{t}, 5, v{bW0}")
    a(f"v_xor_b32 v{bW1}, 32, v{bW0}")
    a(f"v_and_b32 v{t}, 15, v1")
    a(f"v_lshlrev_b32 v{bX0}, 7, v{t}")
    a(f"v_lshrrev_b32 v{t}, 1, v{t}")
    a(f"v_xor_b32 v{t}, v{t}, v{g}")
    a(f"v_lshl_add_u32 v{bX0}, v{t}, 4, v{bX0}")
    a(f"v_xor_b32 v{bX1}, 64, v{bX0}")
    a(f"v_mov_b32 v{vZ}, 0")
    for i in range(128):
        a(f"v_mov_b32 v{ACC+i}, 0")

    def reads(fs, wa0, wa1, xa, wsub):
        out = []
        def xr(j): return f"ds_read_b128 {vr(fs+16+4*j,4)}, v{xa} offset:{j*2048}"
        def wr_(tt, h):
            adr = wa0 if tt % 2 == 0 else wa1
            return f"ds_read_b64_tr_b16 {vr(fs+4*tt+2*h,2)}, v{adr} offset:{wsub + (tt//2)*8192 + h*1024}"
        out.append(xr(0))
        for tt in range(4):
            for h in range(2): out.append(wr_(tt, h))
        for j in range(1, 8): out.append(xr(j))
        return out

    def step(fs_cur, rd):
        k = 0
        for j in range(8):
            for tt in range(4):
                c = ACC + (j * 4 + tt) * 4
                a(f"v_mfma_f32_16x16x32_bf16 {vr(c,4)}, {vr(fs_cur+4*tt,4)}, {vr(fs_cur+16+4*j,4)}, {vr(c,4)}")
                if k < len(rd): a(rd[k])
                k += 1

    a("s_mov_b32 s36, 0")
    a("s_mov_b32 s37, 0")
    a("s_barrier")
    for x in reads(FR[0], bW0, bW1, bX0, 16384): a(x)
    a(f"v_mov_b32 v{aW0}, v{bW0}")
    a(f"v_mov_b32 v{aW1}, v{bW1}")
    a("s_waitcnt lgkmcnt(0)")
    a.label("G1_cloop")
    a(f"v_add_u32 v{aX1}, s36, v{bX1}")
    a(f"s_add_u32 s36, s36, {BLK}")
    a(f"s_cmp_ge_u32 s36, {3*BLK}")
    a("s_cselect_b32 s36, 0, s36")
    a("s_barrier")
    step(FR[0], reads(FR[1], aW0, aW1, aX1, 32768))
    a(f"v_add_u32 v{aW0}, s36, v{bW0}")
    a(f"v_add_u32 v{aW1}, s36, v{bW1}")
    a(f"v_add_u32 v{aX0}, s36, v{bX0}")
    a("s_waitcnt lgkmcnt(0)")
    a("s_barrier")
    step(FR[1], reads(FR[0], aW0, aW1, aX0, 16384))
    a("s_add_u32 s37, s37, 1")
    a("s_cmp_lt_u32 s37, 10")
    a("s_waitcnt lgkmcnt(0)")
    a("s_cbranch_scc1 G1_cloop")
    a(f"s_lshl_b32 s26, s{sFT}, 2")
    a("s_add_u32 s26, s26, s3")
    a("s_cmp_ge_u32 s26, 54")
    a("s_cbranch_scc1 G1_end")
    a(f"s_mul_i32 s27, s{sMT}, 108")
    a("s_add_u32 s27, s27, s26")
    a("s_lshl_b32 s27, s27, 12")
    a(f"s_add_u32 s28, s27, {54*4096}")
    a("v_lshlrev_b32 v2, 4, v1")
    for j in range(8):
        O = 16 + (j % 4) * 4
        for tt in range(2):
            G = ACC + (j * 4 + tt) * 4; U = ACC + (j * 4 + 2 + tt) * 4
            for q in range(2):
                t0 = 32 + ((j * 4 + tt * 2 + q) % 4) * 6
                a(f"v_cvt_pk_bf16_f32 v{t0}, v{G+2*q}, v{G+2*q+1}")
                a(f"v_cvt_pk_bf16_f32 v{t0+1}, v{U+2*q}, v{U+2*q+1}")
                a(f"v_max_i16_sdwa v{t0+2}, v{t0}, v{vZ} dst_sel:WORD_1 dst_unused:UNUSED_PAD src0_sel:WORD_0 src1_sel:WORD_0")
                a(f"v_max_i16_sdwa v{t0+3}, v{t0}, v{vZ} dst_sel:WORD_1 dst_unused:UNUSED_PAD src0_sel:WORD_1 src1_sel:WORD_0")
                unpack(a, t0 + 4, t0 + 5, t0 + 1)
                a(f"v_pk_mul_f32 {vr(t0+2,2)}, {vr(t0+2,2)}, {vr(t0+4,2)}")
                a(f"v_cvt_pk_bf16_f32 v{O+tt*2+q}, v{t0+2}, v{t0+3}")
        a(f"buffer_store_dwordx4 {vr(O,4)}, v2, s[4:7], s{27 + j//4} offen offset:{(j%4)*1024}")
    a.label("G1_end")
    a("s_endpgm")
    return a


CV_LDS = 21504
CV_KC = 4608
CV_CS = 4160

def conv_role(a, s_ch, s_lds, sXNT, sKL, sDSK, sAT):
    vL, vN, vG, vT, vO16 = 1, 2, 3, 4, 5
    vA, vB, vD, vZ = 6, 7, 8, 10
    S2 = 16
    S1 = 24
    E = 40
    FA = [64, 128]
    ACC = 192
    a(f"v_and_b32 v{vL}, 63, v0")
    a(f"v_lshlrev_b32 v{vO16}, 4, v{vL}")
    a(f"s_lshl_b32 s40, s{s_ch}, 12")
    a(f"s_lshl_b32 s41, s{s_ch}, 1")
    a(f"v_mov_b32 v{vZ}, 0")
    for i in range(4):
        a(f"s_add_u32 m0, s{s_lds}, {512 + 0}")
        a(f"buffer_load_dwordx4 v{vO16}, {sr(sXNT,4)}, s40 offen offset:{i*1024} lds")
    a(f"buffer_load_ushort v{vD}, v{vZ}, {sr(sDSK,4)}, s41 offen")
    a(f"v_max_u32 v{vT}, 8, v{vO16}")
    a(f"v_subrev_u32 v{vT}, 8, v{vT}")
    a(f"v_cmp_eq_u32 vcc, 0, v{vL}")
    for i in range(4):
        a(f"buffer_load_dwordx4 {vr(S1+4*i,4)}, v{vO16}, {sr(sKL,4)}, s40 offen offset:{i*1024}")
        if i == 0:
            a(f"buffer_load_dwordx2 {vr(S2,2)}, v{vT}, {sr(sKL,4)}, s40 offen")
        else:
            a(f"buffer_load_dwordx2 {vr(S2+2*i,2)}, v{vO16}, {sr(sKL,4)}, s40 offen offset:{i*1024-8}")
    for i in range(1, 4): a(f"v_mov_b32 v{vZ+i}, 0")
    a(f"v_lshlrev_b32 v{vT}, 3, v{vL}")
    a(f"v_add_u32 v{vT}, s{s_lds}, v{vT}")
    a(f"ds_write_b64 v{vT}, {vr(vZ,2)}")
    a(f"v_and_b32 v{vT}, 3, v{vL}")
    a(f"v_mul_u32_u24 v{vT}, {CV_CS}, v{vT}")
    a(f"v_bfe_u32 v{vN}, v{vL}, 2, 1")
    a(f"v_lshl_add_u32 v{vT}, v{vN}, 4, v{vT}")
    a(f"v_add_u32 v{vT}, s{s_lds}, v{vT}")
    a(f"ds_write_b128 v{vT}, {vr(vZ,4)} offset:{CV_KC}")
    a(f"v_and_b32 v{vN}, 15, v{vL}")
    a(f"v_lshrrev_b32 v{vG}, 4, v{vL}")
    a(f"v_lshlrev_b32 v{vB}, 5, v{vN}")
    a(f"v_lshl_add_u32 v{vB}, v{vG}, 4, v{vB}")
    a(f"v_add_u32 v{vB}, s{s_lds}, v{vB}")
    a(f"v_add_u32 v{vB}, 480, v{vB}")
    a(f"v_bfe_u32 v{vT}, v{vL}, 2, 2")
    a(f"v_mul_u32_u24 v{vA}, {CV_CS}, v{vT}")
    a(f"v_and_b32 v{vT}, 3, v{vL}")
    a(f"v_lshl_add_u32 v{vA}, v{vT}, 3, v{vA}")
    a(f"v_lshlrev_b32 v{vT}, 4, v{vG}")
    a(f"v_sub_u32 v{vA}, v{vA}, v{vT}")
    a(f"v_add_u32 v{vA}, s{s_lds}, v{vA}")
    a(f"v_add_u32 v{vA}, {CV_KC + 56}, v{vA}")
    vWr = 9
    a(f"v_add_u32 v{vWr}, s{s_lds}, v{vO16}")
    for i in range(4):
        a(f"s_waitcnt vmcnt({2*(3-i)})")
        q = S1 + 4 * i; p = S2 + 2 * i
        base = CV_KC + 32 + i * 1024
        if i == 0:
            a(f"v_cndmask_b32 v{p}, v{p}, v{vZ}, vcc")
            a(f"v_cndmask_b32 v{p+1}, v{p+1}, v{vZ}, vcc")
        a(f"ds_write_b128 v{vWr}, {vr(q,4)} offset:{base}")
        e1, e2, e3 = E, E + 4, E + 8
        a(f"v_alignbit_b32 v{e1}, v{q}, v{p+1}, 16")
        a(f"v_alignbit_b32 v{e1+1}, v{q+1}, v{q}, 16")
        a(f"v_alignbit_b32 v{e1+2}, v{q+2}, v{q+1}, 16")
        a(f"v_alignbit_b32 v{e1+3}, v{q+3}, v{q+2}, 16")
        a(f"ds_write_b128 v{vWr}, {vr(e1,4)} offset:{base + CV_CS}")
        a(f"v_pk_mov_b32 {vr(e2,2)}, {vr(p,2)}, {vr(q,2)} op_sel:[1,0]")
        a(f"v_pk_mov_b32 {vr(e2+2,2)}, {vr(q,2)}, {vr(q+2,2)} op_sel:[1,0]")
        a(f"ds_write_b128 v{vWr}, {vr(e2,4)} offset:{base + 2*CV_CS}")
        a(f"v_alignbit_b32 v{e3}, v{p+1}, v{p}, 16")
        a(f"v_mov_b32 v{e3+1}, v{e1}")
        a(f"v_mov_b32 v{e3+2}, v{e1+1}")
        a(f"v_mov_b32 v{e3+3}, v{e1+2}")
        a(f"ds_write_b128 v{vWr}, {vr(e3,4)} offset:{base + 3*CV_CS}")
        if i < 3: a("s_waitcnt lgkmcnt(0)")
    vU = 9
    a(f"v_lshlrev_b32 v{vU}, 5, v{vN}")
    a(f"v_lshl_add_u32 v{vU}, v{vG}, 3, v{vU}")
    a(f"v_add_u32 v{vT}, s{s_lds}, v{vU}")
    for t in range(8):
        a(f"ds_read_b64 {vr(S2+2*t,2)}, v{vT} offset:{512 + 512*t}")

    def reads(fs):
        out = []
        for j in range(8):
            out.append(f"ds_read_b128 {vr(fs+32+4*j,4)}, v{vB} offset:{512*j}")
            if j == 0 or True:
                for h in range(2):
                    out.append(f"ds_read_b64_tr_b16 {vr(fs+4*j+2*h,2)}, v{vA} offset:{512*j + 8 - 8*h}")
        return out

    for x in reads(FA[0]): a(x)
    a(f"v_lshlrev_b32 v{vD}, 16, v{vD}")
    for t in range(8):
        a(f"s_waitcnt lgkmcnt(15)") if t == 0 else None
        c = ACC + 4 * t
        unpack(a, c, c + 1, S2 + 2 * t)
        unpack(a, c + 2, c + 3, S2 + 2 * t + 1)
        a(f"v_pk_mul_f32 {vr(c,2)}, {vr(c,2)}, {vr(vD,2)} op_sel_hi:[1,0]")
        a(f"v_pk_mul_f32 {vr(c+2,2)}, {vr(c+2,2)}, {vr(vD,2)} op_sel_hi:[1,0]")

    def step(fs, rd):
        k = 0
        for j in range(8):
            for jp in range(8 - j):
                c = ACC + 4 * (j + jp)
                a(f"v_mfma_f32_16x16x32_bf16 {vr(c,4)}, {vr(fs+4*j,4)}, {vr(fs+32+4*jp,4)}, {vr(c,4)}")
                if k < len(rd): a(rd[k])
                k += 1

    lab = a.uid("CV")
    a("s_mov_b32 s42, 0")
    a.label(lab)
    for half in range(2):
        a(f"v_add_u32 v{vA}, 64, v{vA}")
        a(f"v_subrev_u32 v{vB}, 64, v{vB}")
        a("s_waitcnt lgkmcnt(0)")
        step(FA[half], reads(FA[1 - half]))
    a("s_add_u32 s42, s42, 1")
    a("s_cmp_lt_u32 s42, 4")
    a(f"s_cbranch_scc1 {lab}")
    for t in range(8):
        c = ACC + 4 * t; o = S2 + 2 * t
        a(f"v_cvt_pk_bf16_f32 v{o}, v{c}, v{c+1}")
        a(f"v_cvt_pk_bf16_f32 v{o+1}, v{c+2}, v{c+3}")
        a(f"buffer_store_dwordx2 {vr(o,2)}, v{vU}, {sr(sAT,4)}, s40 offen offset:{512*t}")


def k_conv():
    a = Asm()
    a("s_cmp_ge_u32 s2, 160")
    a("s_cbranch_scc1 C_end")
    p = load_ptrs(a, ["dsk", "ws"], 60)
    wave_id(a, 3)
    a("s_waitcnt lgkmcnt(0)")
    a.srd(4, p["ws"], WS_XNT, SZ_X)
    a.srd(8, p["ws"], WS_KL, SZ_X)
    a.srd(12, p["dsk"], 0, D * 2)
    a.srd(16, p["ws"], WS_AT, SZ_X)
    a("s_lshl_b32 s28, s2, 2")
    a("s_add_u32 s28, s28, s3")
    a(f"s_mul_i32 s29, s3, {CV_LDS}")
    a("s_add_u32 s29, s29, 256")
    conv_role(a, 28, 29, 4, 8, 12, 16)
    a.label("C_end")
    a("s_endpgm")
    return a


G2_AT = 81920

def k_gemm2():
    a = Asm()
    a("s_cmp_ge_u32 s2, 256")
    a("s_cbranch_scc1 G2_end")
    p = load_ptrs(a, ["x", "out", "ws"], 60)
    wave_id(a, 3)
    a("s_and_b32 s20, s2, 7")
    a("s_lshr_b32 s21, s2, 3")
    a("s_and_b32 s22, s20, 3")
    a("s_lshl_b32 s22, s22, 3")
    a("s_and_b32 s23, s21, 7")
    a("s_add_u32 s22, s22, s23")
    a("s_lshr_b32 s23, s20, 2")
    a("s_lshl_b32 s23, s23, 2")
    a("s_lshr_b32 s21, s21, 3")
    a("s_add_u32 s23, s23, s21")
    sMT, sNT = 22, 23
    a("v_and_b32 v1, 63, v0")
    a("s_waitcnt lgkmcnt(0)")
    a(f"s_mul_i32 s24, s{sMT}, {54*4096}")
    a(f"s_add_u32 s24, s24, {WS_H:#x}")
    a(f"s_add_u32 s4, s{p['ws']}, s24")
    a(f"s_addc_u32 s5, s{p['ws']+1}, 0")
    a(f"s_mov_b32 s6, {54*4096}")
    a("s_mov_b32 s7, 0x20000")
    a(f"s_mul_i32 s24, s{sNT}, {54*5120}")
    a(f"s_add_u32 s24, s24, {WS_WDT:#x}")
    a(f"s_add_u32 s8, s{p['ws']}, s24")
    a(f"s_addc_u32 s9, s{p['ws']+1}, 0")
    a(f"s_mov_b32 s10, {54*5120}")
    a("s_mov_b32 s11, 0x20000")
    a.srd(12, p["x"], 0, SZ_X)
    a.srd(16, p["out"], 0, SZ_X)
    a.srd(28, p["ws"], WS_AT, SZ_X)
    vO16, vO16b, vXo, vT, vM, vG = 2, 3, 4, 5, 6, 7
    XR = 8
    FR = [20, 56, 92]
    ACC = 128
    a(f"v_lshlrev_b32 v{vO16}, 4, v1")
    a(f"v_add_u32 v{vO16b}, 4096, v{vO16}")
    sH, sW = 32, 33
    a(f"s_lshl_b32 s{sH}, s3, 12")
    a(f"s_mul_i32 s{sW}, s3, 5120")

    def loads(fs):
        out = []
        for i in range(4):
            out.append(f"buffer_load_dwordx4 {vr(fs+20+4*i,4)}, v{vO16}, s[4:7], s{sH} offen offset:{i*1024}")
        for T in range(5):
            if T < 4: out.append(f"buffer_load_dwordx4 {vr(fs+4*T,4)}, v{vO16}, s[8:11], s{sW} offen offset:{T*1024}")
            else: out.append(f"buffer_load_dwordx4 {vr(fs+4*T,4)}, v{vO16b}, s[8:11], s{sW} offen")
        out.append(f"s_add_u32 s{sH}, s{sH}, {4*4096}")
        out.append(f"s_add_u32 s{sW}, s{sW}, {4*5120}")
        return out

    for fs in FR[:2]:
        for x in loads(fs): a(x)
    a(f"v_and_b32 v{vM}, 15, v1")
    a(f"v_lshrrev_b32 v{vG}, 4, v1")
    a(f"v_mul_u32_u24 v{vXo}, 1280, v{vM}")
    a(f"v_lshl_add_u32 v{vXo}, v{vG}, 3, v{vXo}")
    a(f"s_lshl_b32 s34, s{sMT}, 2")
    a("s_add_u32 s34, s34, s3")
    a(f"s_mul_i32 s34, s34, {16*1280}")
    a(f"s_mul_i32 s35, s{sNT}, 160")
    a("s_add_u32 s34, s34, s35")
    for T in range(5):
        a(f"buffer_load_dwordx2 {vr(XR+2*T,2)}, v{vXo}, s[12:15], s34 offen offset:{T*32}")
    a(f"v_lshrrev_b32 v{vT}, 3, v1")
    a(f"v_lshlrev_b32 v{vT}, 12, v{vT}")
    a(f"v_and_b32 v18, 7, v1")
    a(f"v_lshl_add_u32 v{vT}, v18, 4, v{vT}")
    a(f"s_mul_i32 s35, s{sNT}, {80*4096}")
    a(f"s_lshl_b32 s36, s{sMT}, 7")
    a("s_add_u32 s35, s35, s36")
    a("s_lshl_b32 s36, s3, 15")
    a("s_add_u32 s35, s35, s36")
    a("s_lshl_b32 s36, s3, 10")
    for q in range(3):
        if q == 2:
            a("s_cmp_lt_u32 s3, 2")
            a(f"s_cselect_b32 s37, {8*32768}, 0")
            a(f"s_cselect_b32 s38, {8*1024}, 0")
            a("s_add_u32 s37, s35, s37")
            a("s_add_u32 s38, s36, s38")
            a(f"s_add_u32 m0, s38, {G2_AT}")
        else:
            a(f"s_add_u32 s37, s35, {q*4*32768}")
            a(f"s_add_u32 m0, s36, {G2_AT + q*4096}")
        a(f"buffer_load_dwordx4 v{vT}, s[28:31], s37 offen lds")
    for i in range(80): a(f"v_mov_b32 v{ACC+i}, 0")
    a("s_mov_b32 s39, 0")
    first = True
    a.label("G2_loop")
    for u in range(3):
        ld = loads(FR[(u + 2) % 3])
        for x in ld: a(x)
        a("s_waitcnt vmcnt(18)")
        fs = FR[u]
        for i in range(4):
            for T in range(5):
                c = ACC + (i * 5 + T) * 4
                a(f"v_mfma_f32_16x16x32_bf16 {vr(c,4)}, {vr(fs+4*T,4)}, {vr(fs+20+4*i,4)}, {vr(c,4)}")
    a("s_add_u32 s39, s39, 1")
    a("s_cmp_lt_u32 s39, 5")
    a("s_cbranch_scc1 G2_loop")
    a(f"s_mul_i32 s36, s3, {20*1024}")
    a(f"v_add_u32 v{vT}, s36, v{vO16}")
    for tile in range(20):
        a(f"ds_write_b128 v{vT}, {vr(ACC+4*tile,4)} offset:{tile*1024}")
    vTr = 18
    a(f"v_lshrrev_b32 v{vTr}, 2, v1")
    a(f"v_lshlrev_b32 v{vTr}, 7, v{vTr}")
    a(f"v_and_b32 v19, 3, v1")
    a(f"v_lshl_add_u32 v{vTr}, v19, 3, v{vTr}")
    a("s_lshl_b32 s36, s3, 5")
    a(f"s_add_u32 s36, s36, {G2_AT}")
    a(f"v_add_u32 v{vTr}, s36, v{vTr}")
    a(f"s_mul_i32 s36, s3, {5*1024}")
    a(f"v_add_u32 v{vT}, s36, v{vO16}")
    a(f"v_add_u32 v19, 40960, v{vT}")
    a("s_waitcnt vmcnt(0) lgkmcnt(0)")
    a("s_barrier")
    R = 20
    AR = 100
    for T in range(5):
        a(f"ds_read_b64_tr_b16 {vr(AR+2*T,2)}, v{vTr} offset:{T*2048}")
    for T in range(5):
        for s in range(4):
            a(f"ds_read_b128 {vr(R+(T*4+s)*4,4)}, v{vT if s < 2 else 19} offset:{(s%2)*20480 + T*1024}")
    TT = 112
    for T in range(5):
        a(f"s_waitcnt lgkmcnt({min(15, 4*(4-T))})")
        t = TT + (T % 2) * 8
        unpack(a, t, t + 1, XR + 2 * T); unpack(a, t + 2, t + 3, XR + 2 * T + 1)
        unpack(a, t + 4, t + 5, AR + 2 * T); unpack(a, t + 6, t + 7, AR + 2 * T + 1)
        a(f"v_pk_add_f32 {vr(t,2)}, {vr(t,2)}, {vr(t+4,2)}")
        a(f"v_pk_add_f32 {vr(t+2,2)}, {vr(t+2,2)}, {vr(t+6,2)}")
        a(f"v_cvt_pk_bf16_f32 v{t+1}, v{t}, v{t+1}")
        a(f"v_cvt_pk_bf16_f32 v{t+3}, v{t+2}, v{t+3}")
        unpack(a, t, t + 1, t + 1); unpack(a, t + 2, t + 3, t + 3)
        b = R + T * 16
        for hh in range(2):
            a(f"v_pk_add_f32 {vr(b+2*hh,2)}, {vr(b+2*hh,2)}, {vr(b+4+2*hh,2)}")
            a(f"v_pk_add_f32 {vr(b+8+2*hh,2)}, {vr(b+8+2*hh,2)}, {vr(b+12+2*hh,2)}")
        for hh in range(2):
            a(f"v_pk_add_f32 {vr(b+2*hh,2)}, {vr(b+2*hh,2)}, {vr(b+8+2*hh,2)}")
        a(f"v_cvt_pk_bf16_f32 v{b+1}, v{b}, v{b+1}")
        a(f"v_cvt_pk_bf16_f32 v{b+3}, v{b+2}, v{b+3}")
        unpack(a, b, b + 1, b + 1); unpack(a, b + 2, b + 3, b + 3)
        a(f"v_pk_add_f32 {vr(t,2)}, {vr(t,2)}, {vr(b,2)}")
        a(f"v_pk_add_f32 {vr(t+2,2)}, {vr(t+2,2)}, {vr(b+2,2)}")
        a(f"v_cvt_pk_bf16_f32 v{b+4}, v{t}, v{t+1}")
        a(f"v_cvt_pk_bf16_f32 v{b+5}, v{t+2}, v{t+3}")
        a(f"buffer_store_dwordx2 {vr(b+4,2)}, v{vXo}, s[16:19], s34 offen offset:{T*32}")
    a.label("G2_end")
    a("s_endpgm")
    return a


def main(out):
    ks = [("prep_kernel", k_prep(), 180, 512, 8 * 32 * KG_STRIDE, 168),
          ("gemm1_kernel", k_gemm1(), 224, 512, 3 * BLK, 240),
          ("conv_kernel", k_conv(), 160, 256, 4 * CV_LDS + 256, 224),
          ("gemm2_kernel", k_gemm2(), 256, 256, G2_AT + 10240, 208)]
    s = ""
    for n, _, g, b, lds, _v in ks:
        s += f"; @launch kernel={n} grid=({g},1,1) block=({b},1,1) lds={lds}\n"
    s += '.amdgcn_target "amdgcn-amd-amdhsa--gfx950"\n.text\n'
    for n, a, *_ in ks:
        s += kernel_head(n) + a.text()
    s += '.section .rodata,"a"\n'
    for n, _, g, b, lds, v in ks:
        s += kernel_desc(n, v)
    open(out, "w").write(s)


if __name__ == "__main__":
    main(sys.argv[1] if len(sys.argv) > 1 else f"cdna_kernels/{NAME}.s")
```
